```python
import torch

def _softmax(x, axis=-1):
    return torch.softmax(x, dim=axis)
def _gelu(x):
    return torch.nn.functional.gelu(x, approximate="tanh")
def _silu(x):
    return torch.nn.functional.silu(x)
def _sigmoid(x):
    return torch.sigmoid(x)
def _layernorm(x, axis=-1, eps=1e-5):
    m = x.mean(dim=axis, keepdim=True)
    v = x.var(dim=axis, keepdim=True, unbiased=False)
    return (x - m) / torch.sqrt(v + eps)
def _scatter_add(tgt, idx, src, axis=0):
    return tgt.clone().index_add_(axis, idx, src)
def _segment_sum(src, seg, n):
    out = torch.zeros((n,) + src.shape[1:], dtype=src.dtype)
    return out.index_add_(0, seg, src)
def _pad(x, pw):
    flat = tuple(v for pair in reversed(pw) for v in pair)
    return torch.nn.functional.pad(x, flat)

kernel_name = 'gated_mix__sliding_block_cached__mixer_channel_mlp__decode'

def setup_inputs():

    _w = (lambda a: (lambda t: t.to(torch.bfloat16) if t.is_floating_point() else t)(torch.as_tensor(a)))
    def _A_setup():
        B, Sq, D = 1, 1, 576
        Hq, Hkv, Sk, Dh = 32, 16, 32768, 128
        assert Hq % Hkv == 0, (Hq, Hkv)
        return {
            "x": _w((lambda *s: torch.randn(*s, dtype=torch.bfloat16) * 0.05)(B, Sq, D)),
            "k_cache": _w((lambda *s: torch.randn(*s, dtype=torch.bfloat16) * 6.4)(B, Hkv, Sk, Dh)),
            "v_cache": _w((lambda *s: torch.randn(*s, dtype=torch.bfloat16) * 0.4)(B, Hkv, Sk, Dh)),
            "wq": _w((lambda *s: torch.randn(*s, dtype=torch.bfloat16) * 6.4)(D, Hq * Dh) * (D ** -0.5)),
            "wo": _w((lambda *s: torch.randn(*s, dtype=torch.bfloat16) * 0.4)(Hq * Dh, D) * ((Hq * Dh) ** -0.5)),
        }
    _A_in = _A_setup()

    def _B_setup():
        B, S, D, F = 1, 1, 576, 4608
        return {
            "x": _w((lambda *s: torch.randn(*s, dtype=torch.bfloat16) * 0.05)(B, S, D)),
            "w1": _w((lambda *s: torch.randn(*s, dtype=torch.bfloat16) * 1.6)(D, F) * (D ** -0.5)),
            "b1": _w((lambda *s: torch.randn(*s, dtype=torch.bfloat16) * 0.8)(F)),
            "w2": _w((lambda *s: torch.randn(*s, dtype=torch.bfloat16) * 0.05)(F, D) * (F ** -0.5)),
            "b2": _w((lambda *s: torch.randn(*s, dtype=torch.bfloat16) * 0.05)(D)),
        }
    _B_in = _B_setup()

    return {
        "A_x": _A_in["x"],
        "A_k_cache": _A_in["k_cache"],
        "A_v_cache": _A_in["v_cache"],
        "A_wq": _A_in["wq"],
        "A_wo": _A_in["wo"],
        "B_x": _B_in["x"],
        "B_w1": _B_in["w1"],
        "B_b1": _B_in["b1"],
        "B_w2": _B_in["w2"],
        "B_b2": _B_in["b2"],
        "gate_w": _w((lambda *s: torch.randn(*s, dtype=torch.bfloat16) * 0.05)(576) * 16.0),
    }

def reference(A_x, A_k_cache, A_v_cache, A_wq, A_wo, B_x, B_w1, B_b1, B_w2, B_b2, gate_w):
    def _A_ref(x, k_cache, v_cache, wq, wo):
        B, Sq, D = x.shape
        Hq, Dh = 32, 128
        Hkv, Sk = k_cache.shape[1], k_cache.shape[2]
        W = min(4096, max(256, Sk // 4))
        rep = Hq // Hkv
        q = (lambda x, *d: x.permute(*d))((x @ wq).reshape(B, Sq, Hq, Dh), 0, 2, 1, 3)
        k = (lambda x, n, axis: torch.repeat_interleave(x, n, dim=axis))(k_cache[:, :, Sk - W:, :], rep, axis=1)
        v = (lambda x, n, axis: torch.repeat_interleave(x, n, dim=axis))(v_cache[:, :, Sk - W:, :], rep, axis=1)
        scores = torch.einsum("bhqd,bhkd->bhqk", q, k) * (Dh ** -0.5)
        p = _softmax(scores, axis=-1)
        o = torch.einsum("bhqk,bhkd->bhqd", p, v)
        return (lambda x, *d: x.permute(*d))(o, 0, 2, 1, 3).reshape(B, Sq, Hq * Dh) @ wo

    def _B_ref(x, w1, b1, w2, b2):
        y = _layernorm(x, axis=-1)
        h = _gelu(torch.einsum("bsd,df->bsf", y, w1) + b1)
        return torch.einsum("bsf,fd->bsd", h, w2) + b2

    x = A_x
    g = _sigmoid((x * gate_w).sum(-1, keepdims=True))
    a = _A_ref(x, A_k_cache, A_v_cache, A_wq, A_wo)
    b = _B_ref(x, B_w1, B_b1, B_w2, B_b2)
    return g * a + (1 - g) * b
```

```python
import re
TRANS = ("v_exp_f32","v_log_f32","v_rcp_f32","v_rsq_f32","v_sqrt_f32","v_sin_f32","v_cos_f32","v_rcp_iflag_f32")
def regs_of(tok):
    tok = tok.strip().lstrip('-')
    m = re.fullmatch(r"abs\((.*)\)", tok)
    if m: tok = m.group(1)
    tok = tok.strip('|')
    m = re.fullmatch(r"([vsa])(\d+)", tok)
    if m: return [(m.group(1), int(m.group(2)))]
    m = re.fullmatch(r"([vsa])\[(\d+):(\d+)\]", tok)
    if m: return [(m.group(1), i) for i in range(int(m.group(2)), int(m.group(3))+1)]
    if tok in ("vcc","vcc_lo","vcc_hi"): return [("vcc",0)]
    if tok in ("exec","exec_lo","exec_hi"): return [("exec",0)]
    return []
class Ins:
    def __init__(self, text):
        self.text = text
        t = text.split(";")[0].strip()
        parts = t.split(None, 1)
        self.op = parts[0]
        rest = parts[1] if len(parts) > 1 else ""
        ops = [o.strip() for o in rest.split(",")] if rest else []
        self.mods = ""
        if ops:
            sp = ops[-1].split(None, 1)
            ops[-1] = sp[0]
            if len(sp) > 1: self.mods = sp[1]
        if "quad_perm" in rest:
            head, tail = rest.split("quad_perm", 1)
            ops = [o.strip() for o in head.strip().split(",")]
            sp = ops[-1].split(None,1); ops[-1] = sp[0]
            self.mods = "quad_perm" + tail
        self.ops = ops
        op = self.op
        self.is_mfma = op.startswith("v_mfma")
        self.is_valu = op.startswith("v_") and not self.is_mfma
        self.is_ds = op.startswith("ds_")
        self.is_vmem = op.startswith("buffer_") or op.startswith("global_")
        self.is_salu = op.startswith("s_")
        self.is_trans = any(op.startswith(x) for x in TRANS)
        self.is_dpp = self.is_valu and ("quad_perm" in self.mods or "row_" in self.mods or op.endswith("_dpp"))
        self.is_permlane = op.startswith("v_permlane")
        self.is_readlane = op.startswith("v_readlane") or op.startswith("v_readfirstlane")
        R = [regs_of(o) for o in ops]
        self.defs, self.uses = [], []
        flat = lambda L: [x for l in L for x in l]
        if self.is_mfma:
            self.defs = R[0]; self.uses = flat(R[1:]); self.srcC = R[3] if len(R) > 3 else []
            self.srcAB = R[1] + R[2]
        elif self.is_permlane:
            self.defs = R[0] + R[1]; self.uses = R[0] + R[1]
        elif self.is_valu:
            self.defs = R[0]; self.uses = flat(R[1:])
            if op.startswith("v_fmac") or op.startswith("v_dot2c") or op.startswith("v_mac") : self.uses += R[0]
            if self.is_dpp and "bound_ctrl" not in self.mods: self.uses += R[0]
            if op.startswith("v_cndmask") and len(ops) == 3: self.uses += [("vcc",0)]
            if op.startswith("v_add_co") or op.startswith("v_addc_co") or op.startswith("v_sub_co"):
                self.defs = R[0] + R[1]; self.uses = flat(R[2:])
            if op.startswith("v_cmp") and len(ops)==2:
                self.defs = [("vcc",0)]; self.uses = flat(R)
        elif self.is_ds:
            if op.startswith("ds_read") or op.startswith("ds_bpermute") or op.startswith("ds_swizzle"):
                self.defs = R[0]; self.uses = flat(R[1:])
            else:
                self.uses = flat(R)
        elif self.is_vmem:
            if "_load" in op:
                self.defs = R[0]; self.uses = flat(R[1:])
            elif "atomic" in op:
                self.uses = flat(R)
            else:
                self.uses = flat(R)
        elif self.is_salu:
            if op.startswith("s_cmp") or op.startswith("s_cbranch") or op in ("s_waitcnt","s_barrier","s_nop","s_branch","s_endpgm","s_setprio","s_sleep"):
                self.uses = flat(R)
            else:
                self.defs = R[0] if R else []; self.uses = flat(R[1:])
        self.dpp_src = R[1] if (self.is_dpp and len(R) > 1) else []
        self.store_wide = self.is_vmem and ("store_dwordx4" in op or "store_dwordx3" in op)
        if self.store_wide:
            self.store_data = R[0] if op.startswith("buffer_") else R[1]
    def states(self):
        if self.op == "s_nop": return int(self.ops[0]) + 1
        return 1
def need(p, c):
    n = 0
    pd = set(p.defs); cu = set(c.uses); cd = set(c.defs)
    pv = {r for r in pd if r[0] in ("v","a")}
    ps = {r for r in pd if r[0] in ("s","vcc")}
    if p.is_valu:
        if pv & cu:
            if c.is_mfma: n = max(n, 2)
            if c.is_dpp and pv & set(c.dpp_src): n = max(n, 2)
            if c.is_permlane: n = max(n, 2)
            if c.is_readlane: n = max(n, 1)
            if p.is_trans and c.is_valu: n = max(n, 1)
        if ps & cu:
            if c.is_valu or c.is_mfma: n = max(n, 2)
            if c.is_readlane: n = max(n, 4)
            if c.is_vmem: n = max(n, 5)
            if c.is_salu: n = max(n, 1)
    if p.is_mfma:
        if c.is_mfma:
            if pv & set(c.srcAB): n = max(n, 8)
            if pv & set(c.srcC) and set(c.srcC) != pv: n = max(n, 6)
            if pv & cd and not (pv & set(c.srcC)): n = max(n, 8)
        elif (c.is_valu or c.is_ds or c.is_vmem) and (pv & (cu | cd)):
            n = max(n, 8)
        if c.is_valu and set(p.srcC) & cd: n = max(n, 3)
    if p.store_wide and c.is_valu and set(p.store_data) & cd: n = max(n, 2)
    if p.store_wide and (c.is_ds or c.is_vmem or c.is_mfma) and set(p.store_data) & cd: n = max(n, 1)
    return n
class Emit:
    def __init__(self):
        self.out = []
        self.hist = []
        self.vm = []
        self.nops = 0
        self.protected = set()
    def raw(self, s):
        self.out.append(s)
    def label(self, name, keep=True):
        self.out.append(name + ":")
    def flush_hist(self): self.hist = []
    def c(self, s): self.out.append("  ; " + s)
    def __call__(self, text, tag=None):
        for line in text.strip("\n").split("\n"):
            line = line.strip()
            if not line or line.startswith(";"):
                if line: self.out.append("  " + line)
                continue
            if line.endswith(":"):
                self.label(line[:-1]); continue
            ins = Ins(line)
            for r in ins.defs:
                if r[0] == "s" and r[1] in self.protected:
                    raise RuntimeError("write to protected SGPR: " + line)
            dist = 0; req = 0
            for p in reversed(self.hist):
                r = need(p, ins)
                if r > dist: req = max(req, r - dist)
                dist += p.states()
                if dist >= 12: break
            while req > 0:
                k = min(req, 16)
                self.out.append(f"  s_nop {k-1}")
                self.hist.append(Ins(f"s_nop {k-1}")); self.nops += 1
                req -= k
            self.out.append("  " + line)
            self.hist.append(ins)
            if len(self.hist) > 40: self.hist = self.hist[-24:]
            if ins.is_vmem:
                self.vm.append(tag if tag else ("_" + ins.op))
            if ins.op == "s_waitcnt":
                m = re.search(r"vmcnt\((\d+)\)", line)
                if m:
                    n = int(m.group(1))
                    self.vm = self.vm[len(self.vm)-n:] if n and n < len(self.vm) else ([] if n == 0 else self.vm)
    def wait_vm(self, tag, extra=""):
        if tag not in self.vm:
            return
        i = len(self.vm) - 1 - self.vm[::-1].index(tag)
        n = len(self.vm) - 1 - i
        assert n <= 63
        self(f"s_waitcnt vmcnt({n}) {extra}".strip())
    def protect(self, *quads):
        for q in quads: self.protected |= set(range(q, q+4))
    def outstanding(self): return len(self.vm)
    def text(self): return "\n".join(self.out) + "\n"
```

```python
import sys, os
from emit import Emit
KNAME = "gated_mix__sliding_block_cached__mixer_channel_mlp__decode_kernel"

WS_QP, WS_HP, WS_ML, WS_OP, WS_FP, WS_SZ = 0x1000, 0x11000, 0x1F000, 0x21000, 0x61000, 0x85000
WS_STAMP = 0x100000
XT, YT, HT, OT, ZEND = 0, 4608, 10752, 13056, 16384
XR, QB, MLL, GL, DQ, DH = 16384, 18432, 18944, 19008, 19456, 23552
DO = DQ
LDS_BYTES = 27648
HUGE = 0x40000000
LOG2E = 0x3fb8aa3b
SCALE = 0x3db504f3
SPIN_MAX = 200000

class Cfg:
    profile = False
    depth = 7
    k_start = 3
    v_pre = 6
    v_qk = 4
    prefetch_code = True
    code_kb = 10

def f2u(x):
    import struct
    return struct.unpack("<I", struct.pack("<f", x))[0]

def gen(cfg):
    e = Emit()
    P = cfg.profile
    stamp_n = [0]
    def stamp(role, slot):
        if P: e(f"s_memrealtime s[{64+2*slot}:{65+2*slot}]")
    def stamp_flush(nslots):
        if not P: return
        e(f"""
s_waitcnt lgkmcnt(0)
s_mul_i32 s60, s2, 5
s_add_u32 s60, s60, s3
s_lshl_b32 s60, s60, 7
s_add_u32 s60, s60, {WS_STAMP}
s_add_u32 s62, s48, s60
s_addc_u32 s63, s49, 0
s_mov_b32 exec_lo, 1
s_mov_b32 exec_hi, 0
v_mov_b32 v0, 0
""")
        for i in range(nslots):
            e(f"v_mov_b32 v2, s{64+2*i}")
            e(f"global_store_dword v0, v2, s[62:63] offset:{4*i}")
            e("s_nop 1")

    e.raw(f"{KNAME}:")
    e(f"""
s_cmp_ge_u32 s2, 256
s_cbranch_scc1 L_END
s_load_dwordx2 s[48:49], s[0:1], 104
v_lshrrev_b32 v1, 6, v0
v_and_b32 v0, 63, v0
s_and_b32 s52, s2, 7
v_readfirstlane_b32 s3, v1
s_lshr_b32 s53, s2, 3
s_mov_b32 s50, {WS_SZ}
s_mov_b32 s51, 0x00020000
""")
    stamp("all", 0)
    e("""
s_cmp_eq_u32 s3, 0
s_cbranch_scc1 L_COMM
""")
    e(f"""
s_load_dwordx2 s[16:17], s[0:1], 24
s_load_dwordx2 s[24:25], s[0:1], 48
s_load_dwordx2 s[8:9], s[0:1], 8
s_load_dwordx2 s[12:13], s[0:1], 16
s_load_dwordx2 s[32:33], s[0:1], 64
s_load_dwordx2 s[20:21], s[0:1], 32
s_sub_u32 s54, s3, 1
s_lshr_b32 s55, s53, 2
s_lshl_b32 s56, s52, 3
s_add_u32 s55, s55, s56
s_lshl_b32 s55, s55, 7
s_and_b32 s56, s53, 3
s_mul_i32 s56, s56, 18
s_mul_i32 s57, s54, 5
s_cmp_eq_u32 s54, 3
s_subb_u32 s57, s57, 0
s_add_u32 s56, s56, s57
s_lshl_b32 s56, s56, 16
s_add_u32 s55, s55, s56
v_lshrrev_b32 v10, 3, v0             ; l>>3
v_and_b32 v11, 7, v0
v_lshlrev_b32 v11, 4, v11            ; (l&7)*16
v_lshl_add_u32 v2, v10, 13, v11      ; voff_wq
s_cmp_ge_u32 s54, 2
s_cselect_b32 s58, {HUGE}, 0
v_or_b32 v3, s58, v2
; w1 unit: cb1 = 9x + idx/3, ks1 = idx%3
s_mul_hi_u32 s59, s53, 0x55555556    ; idx/3
s_mul_i32 s60, s59, 3
s_sub_u32 s60, s53, s60              ; idx%3
s_mul_i32 s61, s52, 9
s_add_u32 s61, s61, s59
s_lshl_b32 s61, s61, 7
s_mul_i32 s62, s60, 24
s_mul_i32 s63, s54, 6
s_add_u32 s62, s62, s63
s_mul_i32 s62, s62, {8*9216}
s_add_u32 s56, s61, s62              ; s56 = w1 soffset
v_mul_u32_u24 v4, 9216, v10
v_add_u32 v4, v4, v11
s_cmp_ge_u32 s53, 27
s_cselect_b32 s58, {HUGE}, 0
v_or_b32 v4, s58, v4                 ; voff_w1
s_mov_b32 s18, {576*8192}
s_mov_b32 s19, 0x00020000
s_mov_b32 s26, {576*9216}
s_mov_b32 s27, 0x00020000
s_waitcnt lgkmcnt(0)
""")
    stamp("s", 1)
    EREG = 128
    for i in range(5):
        vo = "v3" if i == 4 else "v2"
        e(f"buffer_load_dwordx4 v[{EREG+4*i}:{EREG+4*i+3}], {vo}, s[16:19], s55 offen nt", tag=f"E{i}")
        if i < 4: e(f"s_add_u32 s55, s55, {8*8192}")
    for i in range(6):
        e(f"buffer_load_dwordx4 v[{EREG+20+4*i}:{EREG+20+4*i+3}], v4, s[24:27], s56 offen nt", tag=f"E{5+i}")
        if i < 5: e(f"s_add_u32 s56, s56, {8*9216}")
    e(f"""
s_load_dword s40, s[48:49], 0
s_mov_b32 s10, 0x08000000
s_mov_b32 s11, 0x00020000
s_mov_b32 s14, 0x08000000
s_mov_b32 s15, 0x00020000
s_mov_b32 s34, {4608*1152}
s_mov_b32 s35, 0x00020000
s_mov_b32 s22, {4096*1152}
s_mov_b32 s23, 0x00020000
s_and_b32 s55, s53, 1
s_lshl_b32 s56, s52, 1
s_add_u32 s55, s55, s56
s_lshl_b32 s55, s55, 23
s_lshr_b32 s56, s53, 1
s_lshl_b32 s58, s56, 16
s_add_u32 s55, s55, s58
s_lshl_b32 s58, s56, 12
s_add_u32 s55, s55, s58
s_lshl_b32 s58, s54, 10
s_add_u32 s55, s55, s58
s_add_u32 s55, s55, {28672*256}
; final unit: rg = 8x + idx/3, ct = idx%3, jb = 3ct+sv
s_lshl_b32 s61, s52, 3
s_add_u32 s59, s59, s61              ; s59 = rg
s_mul_i32 s60, s60, 3
s_add_u32 s60, s60, s54              ; s60 = jb
s_lshl_b32 s61, s60, 7
s_mul_i32 s62, s59, {72*1152}
s_add_u32 s62, s62, s61              ; s62 = w2 soffset
s_mul_i32 s63, s59, {64*1152}
s_add_u32 s63, s63, s61
s_cmp_lt_u32 s53, 24
s_cselect_b32 s41, 1, 0
s_cmp_lt_u32 s54, 3
s_cselect_b32 s41, s41, 0
s_cmp_eq_u32 s41, 0
s_cselect_b32 s58, {HUGE}, 0
v_mul_u32_u24 v7, 1152, v10
v_add_u32 v7, v7, v11
v_or_b32 v7, s58, v7                 ; voff_F
v_lshlrev_b32 v6, 4, v0              ; voff_V = l*16
v_lshrrev_b32 v12, 4, v0             ; l>>4
v_lshlrev_b32 v5, 6, v12
v_bfe_u32 v13, v0, 2, 2
v_lshl_add_u32 v5, v13, 8, v5
v_and_b32 v13, 3, v0
v_lshl_add_u32 v5, v13, 4, v5        ; voff_K
v_lshlrev_b32 v9, 6, v12
v_lshl_add_u32 v9, v13, 4, v9
v_bfe_u32 v14, v0, 3, 1
v_lshl_add_u32 v9, v14, 8, v9
v_add_u32 v9, {QB}, v9
v_and_b32 v13, 1, v0
v_lshlrev_b32 v13, 4, v13
v_lshl_add_u32 v8, v10, 5, v13
v_bfe_u32 v14, v0, 1, 2              ; j = (l&7)>>1
v_lshlrev_b32 v13, 2, v14
v_sub_u32 v8, v8, v13
v_add_u32 v8, 12, v8                 ; a_delta
; masks M0..M3 -> v12..v15
v_and_b32 v13, 1, v0
v_mov_b32 v16, 0xffff
v_lshlrev_b32 v13, 4, v13
v_lshlrev_b32 v16, v13, v16          ; 0xffff << 16*(l&1)
v_cmp_eq_u32 vcc, 0, v14
v_cndmask_b32 v12, 0, v16, vcc
v_cmp_eq_u32 vcc, 1, v14
v_cndmask_b32 v13, 0, v16, vcc
v_cmp_eq_u32 vcc, 3, v14
v_cndmask_b32 v15, 0, v16, vcc
v_cmp_eq_u32 vcc, 2, v14
v_cndmask_b32 v14, 0, v16, vcc
v_mov_b32 v20, 0
v_mov_b32 v21, 0
v_mov_b32 v22, 0
v_mov_b32 v23, 0
s_lshl_b32 s58, s54, 12
v_add_u32 v17, s58, v6
ds_write_b128 v17, v[20:23]
ds_write_b128 v17, v[20:23] offset:1024
ds_write_b128 v17, v[20:23] offset:2048
ds_write_b128 v17, v[20:23] offset:3072
s_mul_i32 s57, s54, 5
s_cmp_eq_u32 s54, 3
s_subb_u32 s57, s57, 0
s_lshl_b32 s57, s57, 8
v_add_u32 v18, s57, v8
s_mul_i32 s58, s54, {6*256}
s_add_u32 s58, s58, {YT}
v_add_u32 v19, s58, v8
s_waitcnt lgkmcnt(0)
; tag
s_mul_i32 s40, s40, 0x9E3779B1
s_add_u32 s40, s40, 0x7F4A7C15
s_and_b32 s40, s40, 0xFFFFFFFE
s_or_b32 s40, s40, 0x100
s_barrier
s_barrier
""")
    stamp("s", 2)
    e.protect(8, 12, 16, 20, 24, 32, 48)
    AQ = 20
    DQR, DHR = 44, 48
    KREG, VREG = 64, 128
    knext = [0]
    def issue_K():
        i = knext[0]; knext[0] += 1
        e(f"s_xor_b32 s58, s55, {i<<12}")
        e(f"buffer_load_dwordx4 v[{KREG+4*i}:{KREG+4*i+3}], v5, s[8:11], s58 offen nt", tag=f"K{i}")
    vnext = [0]
    def issue_V():
        i = vnext[0]; vnext[0] += 1
        e(f"s_xor_b32 s58, s55, {i<<12}")
        e(f"buffer_load_dwordx4 v[{VREG+4*i}:{VREG+4*i+3}], v6, s[12:15], s58 offen nt", tag=f"V{i}")
    def freg(i): return KREG+4*i if i < 16 else 196
    fnext = [0]
    def issue_F():
        i = fnext[0]; fnext[0] += 1
        r = freg(i)
        if i < 9:
            e(f"buffer_load_dwordx4 v[{r}:{r+3}], v7, s[32:35], s62 offen nt", tag=f"F{i}")
            if i < 8: e(f"s_add_u32 s62, s62, {8*1152}")
        else:
            e(f"buffer_load_dwordx4 v[{r}:{r+3}], v7, s[20:23], s63 offen nt", tag=f"F{i}")
            if i < 16: e(f"s_add_u32 s63, s63, {8*1152}")
    for i in range(5):
        e(f"ds_read_b128 v[{AQ+4*i}:{AQ+4*i+3}], v18 offset:{XT+256*i}")
    for i in range(5):
        e(f"s_waitcnt lgkmcnt({4-i})")
        e.wait_vm(f"E{i}")
        c = "0" if i == 0 else f"v[{DQR}:{DQR+3}]"
        e(f"v_mfma_f32_16x16x32_bf16 v[{DQR}:{DQR+3}], v[{AQ+4*i}:{AQ+4*i+3}], v[{EREG+4*i}:{EREG+4*i+3}], {c}")
        if i >= cfg.k_start: issue_K()
    for i in range(6):
        e(f"ds_read_b128 v[{AQ+4*i}:{AQ+4*i+3}], v19 offset:{256*i}")
    e(f"s_lshl_b32 s58, s54, 10")
    e(f"v_add_u32 v17, s58, v6")
    e(f"ds_write_b128 v17, v[{DQR}:{DQR+3}] offset:{DQ}")
    for i in range(6):
        e(f"s_waitcnt lgkmcnt({6-i})" if i < 5 else "s_waitcnt lgkmcnt(1)")
        e.wait_vm(f"E{5+i}")
        c = "0" if i == 0 else f"v[{DHR}:{DHR+3}]"
        e(f"v_mfma_f32_16x16x32_bf16 v[{DHR}:{DHR+3}], v[{AQ+4*i}:{AQ+4*i+3}], v[{EREG+20+4*i}:{EREG+20+4*i+3}], {c}")
        if 5+i >= cfg.k_start: issue_K()
    e(f"ds_write_b128 v17, v[{DHR}:{DHR+3}] offset:{DH}")
    e("s_waitcnt lgkmcnt(0)")
    e("s_barrier")
    stamp("s", 3)
    D = cfg.depth
    while knext[0] < 16:
        if e.outstanding() >= D: e(f"s_waitcnt vmcnt({D-1})")
        issue_K()
    while vnext[0] < cfg.v_pre:
        if e.outstanding() >= D: e(f"s_waitcnt vmcnt({D-1})")
        issue_V()
    e("s_barrier")
    stamp("s", 4)
    QOP = 192
    SC = 44
    DT = [20, 24, 28, 32]
    T0, T1 = 60, 61
    e(f"ds_read_b128 v[{QOP}:{QOP+3}], v9")
    e(f"s_mov_b32 s42, {SCALE:#x}")
    e(f"s_mov_b32 s43, {LOG2E:#x}")
    e("s_waitcnt lgkmcnt(0)")
    def qk_mfma(i):
        e.wait_vm(f"K{i}")
        d = DT[i % 4]
        e(f"v_mfma_f32_16x16x32_bf16 v[{d}:{d+3}], v[{KREG+4*i}:{KREG+4*i+3}], v[{QOP}:{QOP+3}], 0")
    def qk_reduce(i):
        d = DT[i % 4]; s = SC + i
        e(f"v_mov_b32_dpp v{s}, v{d} quad_perm:[0,0,0,0] row_mask:0xf bank_mask:0xf bound_ctrl:1")
        for r in (1,2,3):
            e(f"v_add_f32_dpp v{s}, v{d+r}, v{s} quad_perm:[{r},{r},{r},{r}] row_mask:0xf bank_mask:0xf bound_ctrl:1")
    def qk_round(i):
        a, b = SC+i, SC+i+1
        e(f"""
v_cvt_pk_bf16_f32 v{T0}, v{a}, v{b}
v_lshlrev_b32 v{a}, 16, v{T0}
v_and_b32 v{b}, 0xffff0000, v{T0}
v_mul_f32 v{a}, s42, v{a}
v_mul_f32 v{b}, s42, v{b}
v_cvt_pk_bf16_f32 v{T0}, v{a}, v{b}
v_lshlrev_b32 v{a}, 16, v{T0}
v_and_b32 v{b}, 0xffff0000, v{T0}
""")
    for i in range(3): qk_mfma(i)
    vq = 0
    for i in range(16):
        if i + 3 < 16: qk_mfma(i+3)
        qk_reduce(i)
        if i % 2 == 1: qk_round(i-1)
        if i % 4 == 3 and vq < cfg.v_qk:
            issue_V(); vq += 1
    M = 62
    e(f"v_max3_f32 v{M}, v{SC}, v{SC+1}, v{SC+2}")
    for k in range(3, 15, 2):
        e(f"v_max3_f32 v{M}, v{M}, v{SC+k}, v{SC+k+1}")
    e(f"v_max_f32 v{M}, v{M}, v{SC+15}")
    e(f"""
v_mov_b32 v{T0}, v{M}
v_permlane16_swap_b32 v{M}, v{T0}
v_max_f32 v{M}, v{M}, v{T0}
v_mov_b32 v{T0}, v{M}
v_permlane32_swap_b32 v{M}, v{T0}
v_max_f32 v{M}, v{M}, v{T0}
v_mul_f32 v{M}, s43, v{M}
""")
    for i in range(16):
        e(f"v_fma_f32 v{SC+i}, v{SC+i}, s43, -v{M}")
    for i in range(16):
        e(f"v_exp_f32 v{SC+i}, v{SC+i}")
    L = 63
    e(f"v_add_f32 v{L}, v{SC}, v{SC+1}")
    e(f"v_add_f32 v{T0}, v{SC+2}, v{SC+3}")
    for i in range(4, 16, 2):
        e(f"v_add_f32 v{L}, v{L}, v{SC+i}")
        e(f"v_add_f32 v{T0}, v{T0}, v{SC+i+1}")
    e(f"v_add_f32 v{L}, v{L}, v{T0}")
    e(f"""
v_mov_b32 v{T0}, v{L}
v_permlane16_swap_b32 v{L}, v{T0}
v_add_f32 v{L}, v{L}, v{T0}
v_mov_b32 v{T0}, v{L}
v_permlane32_swap_b32 v{L}, v{T0}
v_add_f32 v{L}, v{L}, v{T0}
""")
    e(f"""
s_lshl_b32 s58, s54, 4
s_add_u32 s58, s58, {MLL}
v_and_b32 v{T0}, 8, v0
v_add_u32 v{T0}, s58, v{T0}
s_mov_b32 exec_lo, 0x101
s_mov_b32 exec_hi, 0
ds_write_b64 v{T0}, v[{M}:{M+1}]
s_mov_b64 exec, -1
""")
    for i in range(16):
        e(f"v_cvt_pk_bf16_f32 v{SC+i}, v{SC+i}, v{SC+i}")
    e("s_waitcnt lgkmcnt(0)")
    e("s_barrier")
    stamp("s", 5)
    DOR = 36
    AP = [20, 24, 28]
    def pv_build(i):
        a = AP[i % 3]
        for j in range(4):
            e(f"v_and_b32 v{a+j}, v{SC+i}, v{12+j}")
    pv_build(0); pv_build(1)
    for i in range(16):
        if i + 2 < 16: pv_build(i+2)
        e.wait_vm(f"V{i}")
        a = AP[i % 3]
        c = "0" if i == 0 else f"v[{DOR}:{DOR+3}]"
        e(f"v_mfma_f32_16x16x32_bf16 v[{DOR}:{DOR+3}], v[{a}:{a+3}], v[{VREG+4*i}:{VREG+4*i+3}], {c}")
        if vnext[0] < 16: issue_V()
        elif fnext[0] < 17: issue_F()
    while fnext[0] < 17: issue_F()
    e(f"ds_write_b128 v17, v[{DOR}:{DOR+3}] offset:{DO}")
    e("s_waitcnt lgkmcnt(0)")
    e("s_barrier")
    stamp("s", 6)
    e("s_cmp_eq_u32 s41, 0")
    e("s_cbranch_scc1 L_S_EXIT")
    AH = 128
    for u in range(9):
        e(f"ds_read_b128 v[{AH+4*u}:{AH+4*u+3}], v8 offset:{HT+256*u}")
    e(f"v_mov_b32 v16, {GL}")
    e(f"ds_read_b64 v[18:19], v16")
    DB, DA = 40, 44
    for u in range(9):
        e(f"s_waitcnt lgkmcnt({9-u})")
        e.wait_vm(f"F{u}")
        c = "0" if u == 0 else f"v[{DB}:{DB+3}]"
        e(f"v_mfma_f32_16x16x32_bf16 v[{DB}:{DB+3}], v[{AH+4*u}:{AH+4*u+3}], v[{freg(u)}:{freg(u)+3}], {c}")
    e("s_waitcnt lgkmcnt(0)")
    e(f"""
v_mov_b32 v9, s40
s_mov_b32 s44, 0x07060500
s_mov_b32 s45, 0x07060501
s_mov_b32 s46, 0x07060502
s_mov_b32 s47, 0x07060503
v_and_b32 v10, 7, v0                 ; c8
v_lshrrev_b32 v11, 1, v10
v_lshlrev_b32 v11, 12, v11           ; (c8>>1)*4096
v_and_b32 v10, 1, v10
v_lshl_add_u32 v11, v10, 5, v11      ; + (c8&1)*32
v_bfe_u32 v10, v0, 4, 1
v_lshl_add_u32 v11, v10, 4, v11      ; + hi1*16
s_lshl_b32 s60, s60, 14              ; jb*4*4096
s_lshl_b32 s59, s59, 6               ; rg*64
s_add_u32 s60, s60, s59
s_add_u32 s60, s60, {WS_FP}
""")
    for r in range(4):
        e(f"v_mul_f32 v{DB+r}, v19, v{DB+r}")
    e("s_barrier")
    stamp("s", 7)
    AO = 164
    for u in range(8):
        e(f"ds_read_b128 v[{AO+4*u}:{AO+4*u+3}], v8 offset:{OT+256*u}")
    for u in range(8):
        e(f"s_waitcnt lgkmcnt({7-u})")
        e.wait_vm(f"F{9+u}")
        c = "0" if u == 0 else f"v[{DA}:{DA+3}]"
        e(f"v_mfma_f32_16x16x32_bf16 v[{DA}:{DA+3}], v[{AO+4*u}:{AO+4*u+3}], v[{freg(9+u)}:{freg(9+u)+3}], {c}")
    for r in range(4):
        e(f"v_fma_f32 v{DA+r}, v{DA+r}, v18, v{DB+r}")
    e(f"""
v_permlane32_swap_b32 v{DA}, v{DA+1}
v_permlane32_swap_b32 v{DA+2}, v{DA+3}
v_add_f32_dpp v48, v{DA+1}, v{DA} row_ror:8 row_mask:0xf bank_mask:0xf bound_ctrl:1
v_add_f32_dpp v50, v{DA+3}, v{DA+2} row_ror:8 row_mask:0xf bank_mask:0xf bound_ctrl:1
v_permlane32_swap_b32 v48, v49
v_permlane32_swap_b32 v50, v51
v_perm_b32 v48, v48, v9, s44
v_perm_b32 v49, v49, v9, s45
v_perm_b32 v50, v50, v9, s46
v_perm_b32 v51, v51, v9, s47
s_mov_b32 exec_lo, 0x00ff00ff
s_mov_b32 exec_hi, 0
buffer_store_dwordx4 v[48:51], v11, s[48:51], s60 offen sc1
""")
    stamp("s", 8)
    e("L_S_EXIT:")
    stamp_flush(9)
    e("s_endpgm")

    e.flush_hist(); e.vm = []; e.protected = set()
    e("L_COMM:")
    e(f"""
s_load_dwordx2 s[4:5], s[0:1], 0
s_load_dwordx2 s[40:41], s[0:1], 80
s_load_dwordx2 s[28:29], s[0:1], 56
s_load_dwordx2 s[36:37], s[0:1], 72
s_load_dwordx2 s[44:45], s[0:1], 88
s_mov_b32 s6, 1152
s_mov_b32 s7, 0x00020000
s_mov_b32 s42, 1152
s_mov_b32 s43, 0x00020000
s_mov_b32 s30, 9216
s_mov_b32 s31, 0x00020000
s_mov_b32 s38, 1152
s_mov_b32 s39, 0x00020000
s_mov_b32 s46, 1152
s_mov_b32 s47, 0x00020000
v_lshlrev_b32 v1, 4, v0              ; l*16
s_mul_hi_u32 s59, s53, 0x55555556    ; idx/3
s_mul_i32 s60, s59, 3
s_sub_u32 s60, s53, s60              ; idx%3
s_waitcnt lgkmcnt(0)
buffer_load_dwordx4 v[4:7], v1, s[4:7], 0 offen
buffer_load_dwordx4 v[8:11], v1, s[4:7], 0 offen offset:1024
""")
    e.protect(4, 28, 36, 40, 44, 48)
    stamp("c", 1)
    if cfg.prefetch_code:
        e(f"""
s_getpc_b64 s[56:57]
L_PC:
s_sub_u32 s56, s56, L_PC-{KNAME}
s_subb_u32 s57, s57, 0
s_mul_hi_u32 s58, s53, {(2**32 + cfg.code_kb - 1)//cfg.code_kb}
s_mul_i32 s58, s58, {cfg.code_kb}
s_sub_u32 s58, s53, s58
s_lshl_b32 s58, s58, 10
s_min_u32 s58, s58, L_END-{KNAME}-1024
s_add_u32 s56, s56, s58
s_addc_u32 s57, s57, 0
global_load_dwordx4 v[60:63], v1, s[56:57]
""")
    e(f"""
buffer_load_dwordx4 v[12:15], v1, s[40:43], 0 offen
buffer_load_dwordx4 v[16:19], v1, s[40:43], 0 offen offset:1024
s_load_dword s33, s[48:49], 0
s_lshl_b32 s61, s52, 3
s_add_u32 s59, s59, s61              ; s59 = rg
s_mul_i32 s61, s59, 144
v_lshlrev_b32 v2, 3, v0
v_cmp_gt_u32 vcc, 18, v0
v_mov_b32 v3, {HUGE}
v_cndmask_b32 v2, v3, v2, vcc
s_cmp_lt_u32 s53, 24
s_cselect_b32 s34, 1, 0              ; s34 = heavy
s_cselect_b32 s58, 0, {HUGE}
v_or_b32 v2, s58, v2
buffer_load_dwordx2 v[20:21], v2, s[28:31], s61 offen
s_and_b32 s61, s53, 3
s_mul_i32 s61, s61, 288
s_add_u32 s61, s61, {XR}
v_lshlrev_b32 v22, 1, v0
v_add_u32 v23, s61, v22
s_mul_i32 s61, s60, 384
s_add_u32 s61, s61, {XR}
v_add_u32 v24, s61, v22
v_lshlrev_b32 v25, 5, v0             ; 32*l
v_add_u32 v26, 2048, v25
v_add_u32 v27, 4096, v25
s_barrier
s_waitcnt vmcnt({3 + (1 if cfg.prefetch_code else 0)})
""")
    e(f"""
ds_write_b128 v1, v[4:7] offset:{XR}
ds_write_b128 v1, v[8:11] offset:{XR+1024}
s_waitcnt lgkmcnt(0)
ds_read_u16 v28, v23
ds_read_u16 v29, v23 offset:128
ds_read_u16 v30, v23 offset:256
ds_read_u16 v31, v24
ds_read_u16 v32, v24 offset:128
ds_read_u16 v33, v24 offset:256
""")
    XF = 64
    for k in range(8):
        src = 4+k
        e(f"v_lshlrev_b32 v{XF+2*k}, 16, v{src}")
        e(f"v_and_b32 v{XF+2*k+1}, 0xffff0000, v{src}")
    e("s_waitcnt lgkmcnt(3)")
    for k in range(3):
        e(f"v_lshlrev_b32 v{34+k}, 16, v{28+k}")
    e(f"ds_write2_b32 v25, v28, v34 offset0:3 offset1:7")
    e(f"ds_write2_b32 v26, v29, v35 offset0:3 offset1:7")
    e(f"ds_write2_b32 v27, v30, v36 offset0:3 offset1:7")
    def wsum(r, t):
        for n in (8,4,2,1):
            e(f"v_add_f32_dpp v{r}, v{r}, v{r} row_ror:{n} row_mask:0xf bank_mask:0xf bound_ctrl:1")
        e(f"""
v_mov_b32 v{t}, v{r}
v_permlane16_swap_b32 v{r}, v{t}
v_add_f32 v{r}, v{r}, v{t}
v_mov_b32 v{t}, v{r}
v_permlane32_swap_b32 v{r}, v{t}
v_add_f32 v{r}, v{r}, v{t}
""")
    e(f"v_add_f32 v40, v{XF}, v{XF+1}")
    e(f"v_add_f32 v41, v{XF+2}, v{XF+3}")
    for k in range(4, 16, 2):
        e(f"v_add_f32 v40, v40, v{XF+k}")
        e(f"v_add_f32 v41, v41, v{XF+k+1}")
    e("v_add_f32 v40, v40, v41")
    wsum(40, 41)
    e(f"v_mul_f32 v40, {f2u(1.0/576):#x}, v40")
    for k in range(8):
        e(f"v_sub_f32 v{80+k}, v{XF+k}, v40")
    e("v_mul_f32 v42, v80, v80")
    e("v_mul_f32 v43, v81, v81")
    for k in range(2, 8, 2):
        e(f"v_fmac_f32 v42, v{80+k}, v{80+k}")
        e(f"v_fmac_f32 v43, v{80+k+1}, v{80+k+1}")
    e("s_mov_b32 exec_lo, 0xff\ns_mov_b32 exec_hi, 0")
    for k in range(8):
        e(f"v_sub_f32 v{80+k}, v{XF+8+k}, v40")
    for k in range(0, 8, 2):
        e(f"v_fmac_f32 v42, v{80+k}, v{80+k}")
        e(f"v_fmac_f32 v43, v{80+k+1}, v{80+k+1}")
    e("s_mov_b64 exec, -1")
    e("v_add_f32 v42, v42, v43")
    wsum(42, 43)
    e(f"""
v_mul_f32 v42, {f2u(1.0/576):#x}, v42
v_cvt_pk_bf16_f32 v40, v40, v42
v_and_b32 v42, 0xffff0000, v40
v_lshlrev_b32 v40, 16, v40
v_add_f32 v42, {f2u(1e-5):#x}, v42
v_cvt_pk_bf16_f32 v42, v42, v42
v_and_b32 v42, 0xffff0000, v42
v_sqrt_f32 v42, v42
v_cvt_pk_bf16_f32 v42, v42, v42
v_and_b32 v42, 0xffff0000, v42
v_rcp_f32 v42, v42
s_waitcnt lgkmcnt(0)
""")
    for k in range(3):
        e(f"v_lshlrev_b32 v{31+k}, 16, v{31+k}")
        e(f"v_sub_f32 v{31+k}, v{31+k}, v40")
    for k in range(3):
        e(f"v_cvt_pk_bf16_f32 v{31+k}, v{31+k}, v{31+k}")
        e(f"v_and_b32 v{31+k}, 0xffff0000, v{31+k}")
        e(f"v_mul_f32 v{31+k}, v{31+k}, v42")
        e(f"v_cvt_pk_bf16_f32 v{31+k}, v{31+k}, v{31+k}")
        e(f"v_and_b32 v{34+k}, 0xffff0000, v{31+k}")
        e(f"v_and_b32 v{31+k}, 0xffff, v{31+k}")
    e(f"""
v_add_u32 v25, {YT}, v25
v_add_u32 v26, {YT}, v26
v_add_u32 v27, {YT}, v27
ds_write2_b32 v25, v31, v34 offset0:3 offset1:7
ds_write2_b32 v26, v32, v35 offset0:3 offset1:7
ds_write2_b32 v27, v33, v36 offset0:3 offset1:7
s_waitcnt lgkmcnt(0)
s_barrier                            ; B0
""")
    stamp("c", 2)
    e("s_waitcnt vmcnt(1)")
    for k in range(8):
        src = 12+k
        e(f"v_lshlrev_b32 v80, 16, v{src}")
        e(f"v_and_b32 v81, 0xffff0000, v{src}")
        e(f"v_mul_f32 v80, v80, v{XF+2*k}")
        e(f"v_mul_f32 v81, v81, v{XF+2*k+1}")
        e(f"v_cvt_pk_bf16_f32 v80, v80, v81")
        e(f"v_lshlrev_b32 v81, 16, v80")
        e(f"v_and_b32 v80, 0xffff0000, v80")
        if k == 0:
            e("v_add_f32 v44, v80, v81")
        else:
            e("v_add_f32 v44, v44, v80")
            e("v_add_f32 v44, v44, v81")
    wsum(44, 45)
    e(f"""
v_cvt_pk_bf16_f32 v44, v44, v44
v_and_b32 v44, 0xffff0000, v44
v_mul_f32 v44, {0xbfb8aa3b:#x}, v44
v_exp_f32 v44, v44
v_add_f32 v44, 1.0, v44
v_rcp_f32 v44, v44
v_cvt_pk_bf16_f32 v44, v44, v44
v_and_b32 v44, 0xffff0000, v44       ; g
v_sub_f32 v45, 1.0, v44
v_cvt_pk_bf16_f32 v45, v45, v45
v_and_b32 v45, 0xffff0000, v45       ; 1-g
v_mov_b32 v46, {GL}
ds_write_b64 v46, v[44:45]
; tag
s_mul_i32 s32, s33, 0x9E3779B1
s_add_u32 s32, s32, 0x7F4A7C15
s_and_b32 s32, s32, 0xFFFFFFFE
s_or_b32 s32, s32, 0x100
v_mov_b32 v47, s32
s_mov_b32 s8, 0x07060500
s_mov_b32 s9, 0x07060501
s_mov_b32 s10, 0x07060502
s_mov_b32 s11, 0x07060503
s_and_b32 s16, s32, 0xff
s_bfe_u32 s17, s32, 0x80008
s_bfe_u32 s18, s32, 0x80010
s_lshr_b32 s19, s32, 24
v_lshrrev_b32 v2, 5, v0
v_mul_u32_u24 v2, 640, v2
v_bfe_u32 v3, v0, 3, 1
v_lshl_add_u32 v2, v3, 8, v2
v_and_b32 v22, 7, v0
v_lshl_add_u32 v2, v22, 4, v2
v_bfe_u32 v23, v0, 4, 1
v_lshl_add_u32 v2, v23, 12, v2
s_lshr_b32 s55, s53, 2
s_lshl_b32 s56, s52, 3
s_add_u32 s55, s55, s56
s_lshl_b32 s55, s55, 8
s_and_b32 s56, s53, 3
s_lshl_b32 s56, s56, 14
s_add_u32 s55, s55, s56
s_add_u32 s55, s55, {WS_QP}
s_mul_i32 s56, s52, 9
s_mul_hi_u32 s57, s53, 0x55555556
s_add_u32 s56, s56, s57
s_lshl_b32 s56, s56, 8
s_mul_i32 s57, s60, 18432
s_add_u32 s56, s56, s57
s_add_u32 s56, s56, {WS_HP}
s_cmp_ge_u32 s53, 27
s_cselect_b32 s56, {HUGE}, s56
v_mov_b32 v24, s55
v_mov_b32 v25, s56
v_cmp_eq_u32 vcc, 0, v23
v_cndmask_b32 v24, v25, v24, vcc
v_lshl_add_u32 v24, v22, 5, v24
v_lshl_add_u32 v24, v3, 4, v24
s_waitcnt lgkmcnt(0)
s_barrier                            ; B1
""")
    stamp("c", 3)
    for w in range(4):
        e(f"ds_read_b128 v[{64+4*w}:{67+4*w}], v2 offset:{DQ+1024*w}")
    e("s_waitcnt lgkmcnt(2)")
    for r in range(4): e(f"v_add_f32 v{64+r}, v{64+r}, v{68+r}")
    e("s_waitcnt lgkmcnt(0)")
    for r in range(4): e(f"v_add_f32 v{72+r}, v{72+r}, v{76+r}")
    for r in range(4): e(f"v_add_f32 v{64+r}, v{64+r}, v{72+r}")
    e(f"""
v_permlane32_swap_b32 v64, v65
v_permlane32_swap_b32 v66, v67
v_add_f32 v68, v64, v65
v_add_f32 v70, v66, v67
v_permlane32_swap_b32 v68, v69
v_permlane32_swap_b32 v70, v71
v_perm_b32 v68, v68, v47, s8
v_perm_b32 v69, v69, v47, s9
v_perm_b32 v70, v70, v47, s10
v_perm_b32 v71, v71, v47, s11
s_mov_b32 exec_hi, 0
buffer_store_dwordx4 v[68:71], v24, s[48:51], 0 offen sc1
s_mov_b64 exec, -1
""")
    stamp("c", 4)
    e(f"""
s_and_b32 s55, s53, 1
s_lshl_b32 s56, s52, 1
s_add_u32 s55, s55, s56
s_lshl_b32 s56, s55, 10
s_add_u32 s56, s56, {WS_QP}
s_mul_i32 s57, s59, 288
s_add_u32 s57, s57, {WS_HP}
v_lshlrev_b32 v3, 4, v0
v_cmp_gt_u32 vcc, 18, v0
v_mov_b32 v22, {HUGE}
v_cndmask_b32 v3, v22, v3, vcc
s_cmp_eq_u32 s34, 0
s_cselect_b32 s58, {HUGE}, 0
v_or_b32 v3, s58, v3
s_mov_b32 s14, 0
""")
    def untag(bases):
        regs = []
        for b in bases:
            for r in range(4):
                e(f"v_xor_b32 v{b+r}, s{16+r}, v{b+r}")
                regs.append(b+r)
        return regs
    def orall(regs, dst):
        e(f"v_or3_b32 v{dst}, v{regs[0]}, v{regs[1]}, v{regs[2]}")
        k = 3
        while k < len(regs):
            if k + 1 < len(regs):
                e(f"v_or3_b32 v{dst}, v{dst}, v{regs[k]}, v{regs[k+1]}"); k += 2
            else:
                e(f"v_or_b32 v{dst}, v{dst}, v{regs[k]}"); k += 1
    e("L_G1:")
    e.flush_hist()
    for k in range(4):
        e(f"s_add_u32 s58, s56, {16384*k}")
        e(f"buffer_load_dwordx4 v[{64+4*k}:{67+4*k}], v1, s[48:51], s58 offen sc1")
    for k in range(3):
        e(f"s_add_u32 s58, s57, {18432*k}")
        e(f"buffer_load_dwordx4 v[{80+4*k}:{83+4*k}], v3, s[48:51], s58 offen sc1")
    e("s_add_u32 s14, s14, 1")
    e("s_waitcnt vmcnt(0)")
    orall(untag([64,68,72,76]), 100)
    orall(untag([80,84,88]), 104)
    e.c("padding lanes of the h gather read zeros: ignore them")
    e(f"""
v_cmp_gt_u32 vcc, {HUGE}, v3
v_cndmask_b32 v104, 0, v104, vcc
v_or_b32 v100, v100, v104
v_and_b32 v100, 0xff, v100
v_cmp_ne_u32 vcc, 0, v100
s_cmp_ge_u32 s14, {SPIN_MAX}
s_cbranch_scc1 L_G1X
s_cbranch_vccnz L_G1
L_G1X:
""")
    for r in range(4):
        e(f"v_add_f32 v{64+r}, v{64+r}, v{68+r}")
        e(f"v_add_f32 v{72+r}, v{72+r}, v{76+r}")
    for r in range(4):
        e(f"v_add_f32 v{64+r}, v{64+r}, v{72+r}")
    e(f"""
v_cvt_pk_bf16_f32 v64, v64, v65
v_cvt_pk_bf16_f32 v65, v66, v67
v_lshlrev_b32 v2, 3, v0
ds_write_b64 v2, v[64:65] offset:{QB}
s_waitcnt lgkmcnt(0)
s_barrier                            ; B2
""")
    stamp("c", 5)
    for r in range(4):
        e(f"v_add_f32 v{80+r}, v{80+r}, v{84+r}")
    for r in range(4):
        e(f"v_add_f32 v{80+r}, v{80+r}, v{88+r}")
    e("""
v_cvt_pk_bf16_f32 v80, v80, v81
v_cvt_pk_bf16_f32 v82, v82, v83
v_and_b32 v81, 0xffff0000, v80
v_lshlrev_b32 v80, 16, v80
v_and_b32 v83, 0xffff0000, v82
v_lshlrev_b32 v82, 16, v82
v_lshlrev_b32 v84, 16, v20
v_and_b32 v85, 0xffff0000, v20
v_lshlrev_b32 v86, 16, v21
v_and_b32 v87, 0xffff0000, v21
""")
    for r in range(4): e(f"v_add_f32 v{80+r}, v{80+r}, v{84+r}")
    e("""
v_cvt_pk_bf16_f32 v80, v80, v81
v_cvt_pk_bf16_f32 v82, v82, v83
v_and_b32 v81, 0xffff0000, v80
v_lshlrev_b32 v80, 16, v80
v_and_b32 v83, 0xffff0000, v82
v_lshlrev_b32 v82, 16, v82
""")
    import math
    k0 = math.sqrt(2.0/math.pi)
    c1 = -2.0*math.log2(math.e)*k0
    c3 = c1*0.044715
    e(f"s_mov_b32 s58, {f2u(c1):#x}")
    for r in range(4):
        e(f"v_mul_f32 v{84+r}, v{80+r}, v{80+r}")
    for r in range(4):
        e(f"v_mul_f32 v{84+r}, {f2u(c3):#x}, v{84+r}")
    for r in range(4):
        e(f"v_add_f32 v{84+r}, s58, v{84+r}")
    for r in range(4):
        e(f"v_mul_f32 v{84+r}, v{84+r}, v{80+r}")
    for r in range(4):
        e(f"v_exp_f32 v{84+r}, v{84+r}")
    for r in range(4):
        e(f"v_add_f32 v{84+r}, 1.0, v{84+r}")
    for r in range(4):
        e(f"v_rcp_f32 v{84+r}, v{84+r}")
    for r in range(4):
        e(f"v_mul_f32 v{80+r}, v{80+r}, v{84+r}")
    for r in range(4):
        e(f"v_cvt_pk_bf16_f32 v{80+r}, v{80+r}, v{80+r}")
    for r in range(4):
        e(f"v_and_b32 v{84+r}, 0xffff0000, v{80+r}")
        e(f"v_and_b32 v{80+r}, 0xffff, v{80+r}")
    e(f"""
v_lshlrev_b32 v2, 7, v0
v_add_u32 v2, {HT}, v2
s_mov_b32 exec_lo, 0x3ffff
s_mov_b32 exec_hi, 0
ds_write2_b32 v2, v80, v84 offset0:3 offset1:7
ds_write2_b32 v2, v81, v85 offset0:11 offset1:15
ds_write2_b32 v2, v82, v86 offset0:19 offset1:23
ds_write2_b32 v2, v83, v87 offset0:27 offset1:31
s_mov_b64 exec, -1
v_lshrrev_b32 v2, 5, v0
v_lshlrev_b32 v3, 3, v2
v_add_u32 v3, {MLL}, v3
s_waitcnt lgkmcnt(0)
s_barrier                            ; B3
""")
    stamp("c", 6)
    for w in range(4):
        e(f"ds_read_b64 v[{64+2*w}:{65+2*w}], v3 offset:{16*w}")
    e(f"""
s_lshr_b32 s56, s53, 1               ; s
s_lshl_b32 s57, s55, 9
s_lshl_b32 s58, s56, 4
s_add_u32 s57, s57, s58
s_add_u32 s57, s57, {WS_ML}
v_lshlrev_b32 v22, 8, v2
s_lshl_b32 s58, s55, 14
s_lshl_b32 s61, s56, 8
s_add_u32 s58, s58, s61
s_add_u32 s15, s58, {WS_OP}
v_lshlrev_b32 v23, 13, v2
v_bfe_u32 v24, v0, 3, 1
v_lshl_add_u32 v23, v24, 12, v23
v_and_b32 v24, 7, v0
v_lshl_add_u32 v23, v24, 5, v23
v_bfe_u32 v24, v0, 4, 1
v_lshl_add_u32 v23, v24, 4, v23
s_waitcnt lgkmcnt(0)
v_max3_f32 v72, v64, v66, v68
v_max_f32 v72, v72, v70
v_sub_f32 v64, v64, v72
v_sub_f32 v66, v66, v72
v_sub_f32 v68, v68, v72
v_sub_f32 v70, v70, v72
v_exp_f32 v48, v64
v_exp_f32 v49, v66
v_exp_f32 v50, v68
v_exp_f32 v51, v70
v_mul_f32 v73, v48, v65
v_fmac_f32 v73, v49, v67
v_fmac_f32 v73, v50, v69
v_fmac_f32 v73, v51, v71
v_mov_b32 v74, s32
v_mov_b32 v75, s32
s_mov_b32 exec_lo, 1
s_mov_b32 exec_hi, 1
buffer_store_dwordx4 v[72:75], v22, s[48:51], s57 offen sc1
s_mov_b64 exec, -1
s_cmp_eq_u32 s34, 0
s_cbranch_scc1 L_NOML
s_lshr_b32 s58, s59, 1
s_lshl_b32 s58, s58, 8
s_add_u32 s58, s58, {WS_ML}
v_lshrrev_b32 v24, 4, v0
v_add_u32 v24, v24, v0
v_and_b32 v24, 15, v24
v_lshlrev_b32 v24, 4, v24
s_mov_b32 s14, 0
L_G2A:
""")
    e.flush_hist()
    e(f"""
buffer_load_dwordx4 v[64:67], v24, s[48:51], s58 offen sc1
s_add_u32 s14, s14, 1
s_waitcnt vmcnt(0)
v_xor_b32 v66, s32, v66
v_xor_b32 v67, s32, v67
v_or_b32 v66, v66, v67
v_cmp_ne_u32 vcc, 0, v66
s_cmp_ge_u32 s14, {SPIN_MAX}
s_cbranch_scc1 L_G2AX
s_cbranch_vccnz L_G2A
L_G2AX:
v_mov_b32 v68, v64
""")
    for n in (8,4,2,1):
        e(f"v_max_f32_dpp v68, v68, v68 row_ror:{n} row_mask:0xf bank_mask:0xf bound_ctrl:1")
    e("""
v_sub_f32 v64, v64, v68
v_exp_f32 v64, v64
v_mul_f32 v65, v64, v65
""")
    for n in (8,4,2,1):
        e(f"v_add_f32_dpp v65, v65, v65 row_ror:{n} row_mask:0xf bank_mask:0xf bound_ctrl:1")
    e("""
v_rcp_f32 v65, v65
v_mul_f32 v52, v64, v65
L_NOML:
s_barrier                            ; B4
""")
    stamp("c", 7)
    for w in range(4):
        e(f"ds_read_b128 v[{64+4*w}:{67+4*w}], v1 offset:{DO+1024*w}")
    for w in range(4):
        e(f"s_waitcnt lgkmcnt({3-w})")
        for r in range(4):
            if w == 0: e(f"v_mul_f32 v{80+r}, v48, v{64+r}")
            else: e(f"v_fmac_f32 v{80+r}, v{48+w}, v{64+4*w+r}")
    e("""
v_perm_b32 v80, v80, v47, s8
v_perm_b32 v81, v81, v47, s9
v_perm_b32 v82, v82, v47, s10
v_perm_b32 v83, v83, v47, s11
buffer_store_dwordx4 v[80:83], v23, s[48:51], s15 offen sc1
""")
    stamp("c", 8)
    e(f"""
s_cmp_eq_u32 s34, 0
s_cbranch_scc1 L_LIGHT
s_lshl_b32 s58, s59, 12
s_add_u32 s58, s58, {WS_OP}
v_and_b32 v2, 15, v0
v_lshlrev_b32 v2, 7, v2
v_lshrrev_b32 v3, 4, v0
v_lshl_add_u32 v2, v3, 5, v2
v_add_u32 v2, {OT}, v2
s_mov_b32 s14, 0
L_G2:
""")
    e.flush_hist()
    for i in range(4):
        e(f"buffer_load_dwordx4 v[{64+4*i}:{67+4*i}], v1, s[48:51], s58 offen offset:{1024*i} sc1")
    e("s_add_u32 s14, s14, 1")
    e("s_waitcnt vmcnt(0)")
    orall(untag([64,68,72,76]), 100)
    e(f"""
v_and_b32 v100, 0xff, v100
v_cmp_ne_u32 vcc, 0, v100
s_cmp_ge_u32 s14, {SPIN_MAX}
s_cbranch_scc1 L_G2X
s_cbranch_vccnz L_G2
L_G2X:
""")
    for i in range(4):
        for r in range(4):
            op = "v_mul_f32_dpp" if i == 0 else "v_fmac_f32_dpp"
            e(f"{op} v{80+r}, v52, v{64+4*i+r} row_newbcast:{4*i} row_mask:0xf bank_mask:0xf bound_ctrl:1")
    e("""
v_permlane32_swap_b32 v80, v82
v_permlane32_swap_b32 v81, v83
v_add_f32 v80, v80, v82
v_add_f32 v81, v81, v83
v_permlane16_swap_b32 v80, v81
v_add_f32 v80, v80, v81
v_cvt_pk_bf16_f32 v80, v80, v80
v_and_b32 v81, 0xffff0000, v80
v_and_b32 v80, 0xffff, v80
ds_write2_b32 v2, v80, v81 offset0:3 offset1:7
s_waitcnt lgkmcnt(0)
s_barrier                            ; B5
""")
    stamp("c", 9)
    e("s_branch L_C_EXIT")
    e(f"""
L_LIGHT:
s_cmp_lt_u32 s53, 27
s_cbranch_scc1 L_C_EXIT
s_sub_u32 s56, s53, 27
s_lshl_b32 s56, s56, 3
s_add_u32 s56, s56, s52              ; r
s_cmp_ge_u32 s56, 36
s_cbranch_scc1 L_C_EXIT
v_and_b32 v2, 3, v0
v_lshlrev_b32 v2, 2, v2
v_lshrrev_b32 v3, 4, v0
v_add_u32 v2, v2, v3
v_lshlrev_b32 v2, 1, v2
s_lshl_b32 s57, s56, 5
buffer_load_ushort v22, v2, s[36:39], s57 offen
s_lshl_b32 s58, s56, 12
s_add_u32 s58, s58, {WS_FP}
s_mov_b32 s14, 0
L_G3:
""")
    e.flush_hist()
    for i in range(4):
        e(f"buffer_load_dwordx4 v[{64+4*i}:{67+4*i}], v1, s[48:51], s58 offen offset:{1024*i} sc1")
    e("s_add_u32 s14, s14, 1")
    e("s_waitcnt vmcnt(0)")
    orall(untag([64,68,72,76]), 100)
    e(f"""
v_and_b32 v100, 0xff, v100
v_cmp_ne_u32 vcc, 0, v100
s_cmp_ge_u32 s14, {SPIN_MAX}
s_cbranch_scc1 L_G3X
s_cbranch_vccnz L_G3
L_G3X:
""")
    for r in range(4):
        e(f"v_add_f32 v{64+r}, v{64+r}, v{68+r}")
        e(f"v_add_f32 v{72+r}, v{72+r}, v{76+r}")
    for r in range(4):
        e(f"v_add_f32 v{64+r}, v{64+r}, v{72+r}")
    e("""
v_permlane32_swap_b32 v64, v66
v_permlane32_swap_b32 v65, v67
v_add_f32 v64, v64, v66
v_add_f32 v65, v65, v67
v_permlane16_swap_b32 v64, v65
v_add_f32 v64, v64, v65
v_lshlrev_b32 v22, 16, v22
v_add_f32_dpp v64, v64, v64 row_ror:4 row_mask:0xf bank_mask:0xf bound_ctrl:1
v_add_f32_dpp v64, v64, v64 row_ror:8 row_mask:0xf bank_mask:0xf bound_ctrl:1
v_fmac_f32 v64, v45, v22
v_cvt_pk_bf16_f32 v64, v64, v64
s_mov_b32 exec_lo, 0x000f000f
s_mov_b32 exec_hi, 0x000f000f
buffer_store_short v64, v2, s[44:47], s57 offen
s_cmp_lg_u32 s56, 0
s_cbranch_scc1 L_C_EXIT
s_add_u32 s33, s33, 1
v_mov_b32 v2, 0
v_mov_b32 v3, s33
s_mov_b32 exec_lo, 1
s_mov_b32 exec_hi, 0
buffer_store_dword v3, v2, s[48:51], 0 offen
L_C_EXIT:
""")
    stamp("c", 10)
    stamp_flush(11)
    e("L_END:")
    e("s_endpgm")
    return e

HEADER = open(os.path.join(os.path.dirname(os.path.abspath(__file__)), "header.txt")).read()
def full_text(cfg):
    e = gen(cfg)
    body = e.text()
    hdr = HEADER.replace("@LAUNCH@", f"; @launch grid=(256,1,1) block=(320,1,1) lds={LDS_BYTES}")
    desc = f""".section .rodata,"a"
.p2align 6
.amdhsa_kernel {KNAME}
  .amdhsa_next_free_vgpr 200
  .amdhsa_next_free_sgpr 96
  .amdhsa_accum_offset 200
  .amdhsa_group_segment_fixed_size 0
  .amdhsa_kernarg_size 112
  .amdhsa_user_sgpr_count 2
  .amdhsa_user_sgpr_kernarg_segment_ptr 1
  .amdhsa_system_sgpr_workgroup_id_x 1
  .amdhsa_float_denorm_mode_32 3
.end_amdhsa_kernel
"""
    pre = f""".amdgcn_target "amdgcn-amd-amdhsa--gfx950"
.text
.globl {KNAME}
.p2align 8
.type {KNAME},@function
"""
    return hdr + pre + body + desc, e
if __name__ == "__main__":
    cfg = Cfg()
    out = sys.argv[1]
    for a in sys.argv[2:]:
        k, v = a.split("=")
        setattr(cfg, k, type(getattr(cfg, k))(int(v)))
    t, e = full_text(cfg)
    open(out, "w").write(t)
    print("wrote", out, "lines", t.count("\n"), "nops inserted", e.nops)
```
